```python
import torch

def _softmax(x, axis=-1):
    return torch.softmax(x, dim=axis)
def _gelu(x):
    return torch.nn.functional.gelu(x, approximate="tanh")
def _silu(x):
    return torch.nn.functional.silu(x)
def _sigmoid(x):
    return torch.sigmoid(x)
def _layernorm(x, axis=-1, eps=1e-5):
    m = x.mean(dim=axis, keepdim=True)
    v = x.var(dim=axis, keepdim=True, unbiased=False)
    return (x - m) / torch.sqrt(v + eps)
def _scatter_add(tgt, idx, src, axis=0):
    return tgt.clone().index_add_(axis, idx, src)
def _segment_sum(src, seg, n):
    out = torch.zeros((n,) + src.shape[1:], dtype=src.dtype)
    return out.index_add_(0, seg, src)
def _pad(x, pw):
    flat = tuple(v for pair in reversed(pw) for v in pair)
    return torch.nn.functional.pad(x, flat)

kernel_name = 'gated_mix__mha_block__linear_attn_block__prompt'

def setup_inputs():

    _w = (lambda a: (lambda t: t.to(torch.bfloat16) if t.is_floating_point() else t)(torch.as_tensor(a)))
    def _A_setup():
        B, S, D, H = 1, 2048, 512, 32
        return {
            "x": _w((lambda *s: torch.randn(*s, dtype=torch.bfloat16) * 0.05)(B, S, D)),
            "wqkv": _w((lambda *s: torch.randn(*s, dtype=torch.bfloat16) * 0.8)(D, 3 * D)),
            "wo": _w((lambda *s: torch.randn(*s, dtype=torch.bfloat16) * 0.05)(D, D)),
        }
    _A_in = _A_setup()

    def _B_setup():
        B, S, D = 1, 2048, 512
        return {
            "x": _w((lambda *s: torch.randn(*s, dtype=torch.bfloat16) * 0.05)(B, S, D)),
            "wqkv": _w((lambda *s: torch.randn(*s, dtype=torch.bfloat16) * 0.8)(D, 3 * D)),
            "wo": _w((lambda *s: torch.randn(*s, dtype=torch.bfloat16) * 0.2)(D, D)),
        }
    _B_in = _B_setup()

    return {
        "A_x": _A_in["x"],
        "A_wqkv": _A_in["wqkv"],
        "A_wo": _A_in["wo"],
        "B_x": _B_in["x"],
        "B_wqkv": _B_in["wqkv"],
        "B_wo": _B_in["wo"],
        "gate_w": _w((lambda *s: torch.randn(*s, dtype=torch.bfloat16) * 0.05)(512) * 16.0),
    }

def reference(A_x, A_wqkv, A_wo, B_x, B_wqkv, B_wo, gate_w):
    def _A_ref(x, wqkv, wo):
        B, S, D = x.shape
        H = 32
        Dh = D // H
        qkv = (lambda x, *d: x.permute(*d))((x @ wqkv).reshape(B, S, 3, H, Dh), 2, 0, 3, 1, 4)
        q, k, v = qkv[0], qkv[1], qkv[2]
        scores = torch.einsum("bhqd,bhkd->bhqk", q, k) * (Dh ** -0.5)
        p = _softmax(scores, axis=-1)
        o = torch.einsum("bhqk,bhkd->bhqd", p, v)
        return (lambda x, *d: x.permute(*d))(o, 0, 2, 1, 3).reshape(B, S, D) @ wo

    def _B_ref(x, wqkv, wo):
        B, S, D = x.shape
        H = 32; Dh = D // H
        qkv = (lambda x, *d: x.permute(*d))((x @ wqkv).reshape(B, S, 3, H, Dh), 2, 0, 3, 1, 4)
        q, k, v = qkv[0], qkv[1], qkv[2]
        phi = lambda t: torch.where(t > 0, t + 1, torch.exp(t)) + 1e-6
        pq, pk = phi(q), phi(k)
        kv = torch.einsum("bhsd,bhse->bhde", pk, v)
        z = torch.einsum("bhsd->bhd", pk)
        num = torch.einsum("bhqd,bhde->bhqe", pq, kv)
        den = torch.einsum("bhqd,bhd->bhq", pq, z)[..., None] + 1e-6
        o = num / den
        return (lambda x, *d: x.permute(*d))(o, 0, 2, 1, 3).reshape(B, S, D) @ wo

    x = A_x
    g = _sigmoid((x * gate_w).sum(-1, keepdims=True))
    a = _A_ref(x, A_wqkv, A_wo)
    b = _B_ref(x, B_wqkv, B_wo)
    return g * a + (1 - g) * b
```

```python
import re

TRANS = ("v_exp_", "v_log_", "v_rcp_", "v_rsq_", "v_sqrt_", "v_sin_", "v_cos_")
REG = re.compile(r"^(-|abs\(|\|)?([vsa])(?:(\d+)|\[(\d+):(\d+)\])\)?\|?$")


def regs(tok):
    tok = tok.strip()
    if tok in ("vcc", "exec"):
        return {(tok, 0)}
    if tok in ("vcc_lo", "vcc_hi"):
        return {("vcc", 0)}
    if tok == "m0":
        return {("m0", 0)}
    m = REG.match(tok)
    if not m:
        return set()
    k = m.group(2)
    if m.group(3) is not None:
        return {(k, int(m.group(3)))}
    return {(k, i) for i in range(int(m.group(4)), int(m.group(5)) + 1)}


class Ins:
    def __init__(self, text):
        self.text = text
        t = text.split(";")[0].strip()
        self.is_label = t.endswith(":")
        self.is_dir = t.startswith(".") or not t
        self.op = ""
        self.w = set(); self.r = set()
        self.kind = "other"
        self.srcc = set(); self.srcab = set(); self.passes = 0
        self.states = 1
        if self.is_label or self.is_dir:
            self.states = 0
            return
        parts = t.split(None, 1)
        self.op = op = parts[0]
        rest = parts[1] if len(parts) > 1 else ""
        ops = [x.strip() for x in rest.split(",")] if rest else []
        mods = ""
        if ops:
            last = ops[-1].split()
            if last:
                ops[-1] = last[0]
                mods = " ".join(last[1:])
        self.mods = mods
        R = [regs(o) for o in ops]
        if op == "s_nop":
            self.states = int(ops[0], 0) + 1
        elif op.startswith("v_mfma") or op.startswith("v_smfmac"):
            self.kind = "mfma"
            self.passes = 8 if "32x32" in op else 4
            self.w = R[0]
            if op.startswith("v_smfmac"):
                self.srcc = R[0]; self.srcab = R[1] | R[2] | R[3]
            else:
                self.srcc = R[3]; self.srcab = R[1] | R[2]
            self.r = self.srcc | self.srcab
        elif op.startswith("v_"):
            self.kind = "valu"
            self.trans = op.startswith(TRANS)
            if op.startswith("v_permlane"):
                self.w = R[0] | R[1]; self.r = R[0] | R[1]
            elif op.startswith("v_cmp"):
                self.w = R[0]; self.r = set().union(*R[1:])
            elif "_co_" in op:
                self.w = R[0] | R[1]; self.r = set().union(*R[2:])
            else:
                self.w = R[0]; self.r = set().union(*R[1:]) if len(R) > 1 else set()
                if op.startswith(("v_fmac", "v_dot2c", "v_writelane")) or "UNUSED_PRESERVE" in mods:
                    self.r |= R[0]
                if op.startswith("v_cndmask") and len(R) == 3:
                    self.r |= {("vcc", 0)}
            self.dpp = ("row_" in mods or "quad_perm" in mods or "wave_" in mods or op.endswith("_dpp"))
            if self.dpp:
                self.r |= R[0]
        elif op.startswith("ds_"):
            self.kind = "ds"
            if op.startswith(("ds_read", "ds_bpermute", "ds_permute", "ds_swizzle")):
                self.w = R[0]; self.r = set().union(*R[1:])
            else:
                self.r = set().union(*R)
        elif op.startswith(("buffer_", "global_")):
            self.kind = "vmem"
            self.lds = " lds" in (" " + mods)
            self.wide_store = False
            if op.startswith(("buffer_wbl2", "buffer_inv")):
                pass
            elif "load" in op and not self.lds and "_lds_" not in op:
                self.w = R[0]; self.r = set().union(*R[1:])
            else:
                self.r = set().union(*R)
                if "store" in op and ("x3" in op or "x4" in op):
                    self.wide_store = True
                    self.data = R[0] if op.startswith("buffer_") else R[1]
                if "atomic" in op and "sc0" in mods:
                    self.w = R[0]
            if self.lds or "_lds_" in op:
                self.lds = True
                self.r |= {("m0", 0)}
        elif op.startswith("s_"):
            self.kind = "salu"
            if op.startswith(("s_cmp", "s_waitcnt", "s_barrier", "s_branch", "s_cbranch", "s_endpgm", "s_setprio", "s_sleep", "s_bitcmp")):
                self.r = set().union(*R) if R else set()
            else:
                self.w = R[0] if R else set()
                self.r = set().union(*R[1:]) if len(R) > 1 else set()
                if "saveexec" in op:
                    self.w |= {("exec", 0)}


def need(p, c):
    n = 0
    vw = {x for x in p.w if x[0] in "va"}
    sw = {x for x in p.w if x[0] in ("s", "vcc")}
    if p.kind == "valu":
        if c.kind == "mfma" and vw & c.r: n = max(n, 2)
        if c.kind == "valu":
            if p.trans and not c.trans and vw & c.r: n = max(n, 1)
            if c.op.startswith(("v_readfirstlane", "v_readlane")) and vw & c.r: n = max(n, 1)
            if c.op.startswith("v_permlane") and vw & c.r: n = max(n, 2)
            if c.dpp and vw & c.r: n = max(n, 2)
            if p.op.startswith("v_dot") and c.op != p.op and vw & (c.r | c.w): n = max(n, 3)
            if sw & c.r: n = max(n, 4 if c.op.startswith(("v_readlane", "v_writelane", "v_div_fmas")) else 2)
            if ("sdwa" in p.op or "op_sel" in p.mods) and vw & (c.r | c.w): n = max(n, 1)
        if p.op.startswith("v_dot") and c.kind in ("ds", "vmem", "mfma") and vw & c.r: n = max(n, 3)
        if c.kind == "vmem" and sw & c.r: n = max(n, 5)
        if c.kind == "salu" and sw & c.r: n = max(n, 1)
    if p.kind == "mfma":
        full = 12 if p.passes == 8 else 8
        if c.kind == "mfma":
            if vw & c.srcab: n = max(n, full)
            if vw & c.srcc and not (vw == c.srcc and p.passes == c.passes): n = max(n, full - 2)
            if vw & c.w and not (vw & c.srcc): n = max(n, full - 2)
        if c.kind == "valu" and vw & (c.r | c.w): n = max(n, full)
        if c.kind in ("ds", "vmem") and vw & (c.r | c.w): n = max(n, full)
        if c.kind == "valu" and p.srcc & c.w: n = max(n, 7 if p.passes == 8 else 3)
    if p.kind == "salu" and ("m0", 0) in p.w and c.kind == "vmem" and getattr(c, "lds", False): n = max(n, 1)
    if p.kind == "vmem" and p.wide_store and p.data & c.w:
        n = max(n, 2 if c.kind == "valu" else 1)
    return n


class Asm:
    def __init__(self):
        self.lines = []

    def __call__(self, text):
        for l in text.split("\n"):
            l = l.strip()
            if l:
                self.lines.append(l)

    def label(self, name):
        self.lines.append(name + ":")

    def pad(self, window=24, verbose=False):
        ins = [Ins(l) for l in self.lines]
        out = []
        inserted = 0
        for c in ins:
            if not (c.is_label or c.is_dir):
                dist = 0; req = 0
                for p in reversed(out):
                    if p.is_label or p.is_dir:
                        continue
                    if p.op in ("s_branch", "s_endpgm"):
                        break
                    req = max(req, need(p, c) - dist)
                    dist += p.states
                    if dist >= window:
                        break
                while req > 0:
                    k = min(req, 16)
                    out.append(Ins(f"s_nop {k-1}")); inserted += 1
                    if verbose:
                        print("pad", k, "before", c.text)
                    req -= k
            out.append(c)
        labels = {i.text.split(";")[0].strip()[:-1]: n for n, i in enumerate(out) if i.is_label}
        for n, b in enumerate(out):
            if b.op.startswith(("s_branch", "s_cbranch")):
                tgt = b.text.split(";")[0].split()[1]
                real_after = [x for x in out[labels[tgt]:labels[tgt] + 4 * window] if not (x.is_label or x.is_dir)]
                dist_p = 0
                for p in [x for x in reversed(out[:n + 1]) if not (x.is_label or x.is_dir)][:window]:
                    d = dist_p
                    for c in real_after:
                        if d >= window:
                            break
                        if p is not b and need(p, c) > d:
                            raise SystemExit(f"hazard across branch {b.text}: {p.text} -> {c.text} (need {need(p, c)}, have {d})")
                        d += c.states
                        if c.op in ("s_branch", "s_endpgm"):
                            break
                    if p is not b or True:
                        dist_p += p.states
        self.lines = [i.text for i in out]
        return inserted

    def text(self):
        o = []
        for l in self.lines:
            t = l.split(";")[0].strip()
            o.append(l if (t.endswith(":") or t.startswith(".")) else "    " + l)
        return "\n".join(o) + "\n"
```

```python
import struct
import sys
from asmlib import Asm

NAME = "gated_mix__mha_block__linear_attn_block__prompt"

WS_Q = 0
WS_K = 2 << 20
WS_V = 4 << 20
WS_PQ = 6 << 20
WS_KVP = 8 << 20
WS_G = 10 << 20
WS_O = 11 << 20
WS_SIZE = 16 << 20

LOG2E = 1.4426950408889634


def f2u(x):
    return struct.unpack("<I", struct.pack("<f", x))[0]


def hx(x):
    return f"0x{f2u(x):08x}"


def vr(b, n):
    return f"v[{b}:{b + n - 1}]" if n > 1 else f"v{b}"


def srd(a, d, lo, hi, size):
    a(f"s_mov_b32 s{d}, s{lo}")
    a(f"s_mov_b32 s{d + 1}, s{hi}")
    a(f"s_mov_b32 s{d + 2}, {size:#x}")
    a(f"s_mov_b32 s{d + 3}, 0x00020000")


def desc(name, vgpr, sgpr):
    acc = (vgpr + 3) // 4 * 4
    return f""".amdhsa_kernel {name}
  .amdhsa_next_free_vgpr {vgpr}
  .amdhsa_next_free_sgpr {sgpr}
  .amdhsa_accum_offset {acc}
  .amdhsa_group_segment_fixed_size 0
  .amdhsa_kernarg_size 80
  .amdhsa_user_sgpr_count 2
  .amdhsa_user_sgpr_kernarg_segment_ptr 1
  .amdhsa_system_sgpr_workgroup_id_x 1
.end_amdhsa_kernel
"""


def spread(a, mfmas, fillers, per_gap):
    j = 0
    for n, m in enumerate(mfmas):
        a(m)
        k = per_gap if n < len(mfmas) - 1 else len(fillers)
        for _ in range(k):
            if j < len(fillers):
                a(fillers[j]); j += 1


def gen_k1(opt):
    a = Asm()
    ST = opt.get("k1_store", "")
    XS, WS_, WBASE = 16384, 24576, 65536
    ACC = 64
    FR = (16, 36)

    def acc(rt, s):
        return ACC + 16 * (2 * s + rt)

    a.label("qkv_kernel")
    a("""
    s_cmp_ge_u32 s2, 256
    s_cbranch_scc1 K1_done
    s_load_dwordx4 s[36:39], s[0:1], 0
    s_load_dwordx2 s[40:41], s[0:1], 32
    s_load_dwordx2 s[42:43], s[0:1], 48
    s_load_dwordx2 s[44:45], s[0:1], 72
    v_lshrrev_b32 v1, 6, v0
    v_and_b32 v0, 63, v0
    v_readfirstlane_b32 s33, v1            ; wave
    s_and_b32 s46, s2, 7
    s_lshr_b32 s47, s2, 3
    s_and_b32 s34, s46, 1
    s_lshl_b32 s34, s34, 3
    s_and_b32 s48, s47, 7
    s_add_u32 s34, s34, s48
    s_lshr_b32 s35, s46, 1
    s_lshl_b32 s35, s35, 2
    s_lshr_b32 s48, s47, 3
    s_add_u32 s35, s35, s48
    s_lshr_b32 s32, s35, 1
    s_lshl_b32 s49, s32, 7
    s_lshl_b32 s50, s33, 12                ; wave * 4096
    s_lshl_b32 s51, s33, 11                ; wave * 2048
    s_and_b32 s55, s33, 1
    s_lshr_b32 s56, s33, 1
    """)
    a("""
    v_lshrrev_b32 v14, 3, v0
    v_lshrrev_b32 v15, 4, v0
    v_and_b32 v16, 7, v0
    v_xor_b32 v16, v16, v15
    v_lshlrev_b32 v16, 4, v16
    s_lshl_b32 s48, s34, 2
    s_add_u32 s48, s48, s33
    s_lshl_b32 s48, s48, 15
    v_lshl_add_u32 v2, v14, 10, v16
    v_add_u32 v2, s48, v2
    v_xor_b32 v3, 64, v2
    v_add_u32 v3, 0x2000, v3
    v_add_u32 v4, 0x4000, v2
    v_add_u32 v5, 0x4000, v3
    """)
    a("""
    v_and_b32 v17, 1, v15
    v_lshlrev_b32 v17, 2, v17
    v_and_b32 v16, 7, v0
    v_xor_b32 v16, v16, v17
    v_lshlrev_b32 v16, 4, v16
    v_mul_u32_u24 v6, 0xc00, v14
    v_add_u32 v6, v6, v16
    s_mul_i32 s48, s33, 49152
    v_add_u32 v6, s48, v6
    v_add_u32 v7, 0x6000, v6
    """)
    a("""
    v_and_b32 v18, 31, v0
    v_lshrrev_b32 v19, 5, v0
    v_lshlrev_b32 v161, 5, v18
    s_lshl_b32 s48, s2, 3
    s_lshl_b32 s52, s33, 1
    s_add_u32 s48, s48, s52
    v_add_u32 v162, s48, v19
    v_lshl_add_u32 v160, v162, 10, v161
    v_lshlrev_b32 v162, 2, v162
    s_waitcnt lgkmcnt(0)
    """)
    srd(a, 8, 36, 37, 2 << 20)
    srd(a, 28, 42, 43, 1024)
    srd(a, 24, 44, 45, WS_SIZE)
    a("""
    buffer_load_dwordx4 v[164:167], v160, s[8:11], 0 offen
    buffer_load_dwordx4 v[168:171], v160, s[8:11], 0 offen offset:16
    buffer_load_dwordx4 v[172:175], v161, s[28:31], 0 offen
    buffer_load_dwordx4 v[176:179], v161, s[28:31], 0 offen offset:16
    s_bitcmp1_b32 s35, 0
    s_cbranch_scc1 K1_y
    """)

    def variant(typ):
        if typ == "x":
            segs = [(38, 0), (40, 1024), (40, 2048)]
            orient = "TNN"
            phi_seg = 1
        else:
            segs = [(38, 1024), (38, 2048), (40, 0)]
            orient = "TNT"
            phi_seg = 2
        for s, (p, off) in enumerate(segs):
            d = 12 + 4 * s
            a(f"s_add_u32 s48, s49, {off}")
            a(f"s_add_u32 s{d}, s{p}, s48")
            a(f"s_addc_u32 s{d + 1}, s{p + 1}, 0")
            a(f"s_sub_u32 s{d + 2}, {512 * 3072:#x}, s48")
            a(f"s_mov_b32 s{d + 3}, 0x00020000")

        def dma(c):
            st = c % 4
            g = []
            first = f"s_movk_i32 s53, {c * 128}\ns_mov_b32 s54, {c * 64 * 3072:#x}\n"
            for i in range(4):
                g.append((first if i == 0 else "") +
                         f"s_add_u32 m0, s50, {st * XS + i * 1024}\n"
                         f"buffer_load_dwordx4 v{2 + i}, s[8:11], s53 offen lds")
            for s in range(3):
                for jq in range(2):
                    g.append(f"s_add_u32 m0, s51, {WBASE + st * WS_ + s * 8192 + jq * 1024}\n"
                             f"buffer_load_dwordx4 v{6 + jq}, s[{12 + 4 * s}:{15 + 4 * s}], s54 offen lds")
            return g

        for c in range(4):
            for g in dma(c):
                a(g)
        a("""
        v_lshrrev_b32 v14, 1, v18
        v_and_b32 v14, 7, v14
        v_xor_b32 v14, v14, v19
        v_lshlrev_b32 v14, 4, v14
        v_lshl_add_u32 v8, v18, 7, v14
        s_lshl_b32 s48, s55, 13
        v_add_u32 v8, s48, v8
        v_xor_b32 v9, 32, v8
        v_xor_b32 v10, 64, v8
        v_xor_b32 v11, 0x60, v8
        v_bfe_u32 v14, v0, 2, 2
        v_lshlrev_b32 v12, 7, v14
        v_lshl_add_u32 v12, v19, 10, v12
        v_lshrrev_b32 v14, 1, v14
        v_xor_b32 v14, s56, v14
        v_lshl_add_u32 v12, v14, 6, v12
        v_bfe_u32 v14, v0, 4, 1
        v_lshl_add_u32 v12, v14, 5, v12
        v_and_b32 v14, 3, v0
        v_lshl_add_u32 v12, v14, 3, v12
        v_add_u32 v12, 0x10000, v12
        v_add_u32 v13, 0xc000, v12
        """)
        for rt in range(2):
            for i in range(16):
                a(f"v_mov_b32 v{acc(rt, phi_seg) + i}, {hx(1e-6)}")
        a("s_waitcnt vmcnt(40)")
        a("v_dot2_f32_bf16 v163, v164, v172, 0")
        for i in range(1, 8):
            a(f"v_dot2_f32_bf16 v163, v{164 + i}, v{172 + i}, v163")
        for r in (8, 4, 2, 1):
            a(f"v_add_f32_dpp v163, v163, v163 row_ror:{r} row_mask:0xf bank_mask:0xf")
        a(f"""
        v_mov_b32 v164, v163
        v_permlane16_swap_b32 v163, v164
        v_add_f32 v163, v163, v164
        v_mul_f32 v163, {hx(-LOG2E)}, v163
        v_exp_f32 v163, v163
        v_add_f32 v163, 1.0, v163
        v_rcp_f32 v163, v163
        s_mov_b32 s57, {WS_G:#x}
        s_mov_b32 exec_lo, 1
        s_mov_b32 exec_hi, 1
        buffer_store_dword v163, v162, s[24:27], s57 offen
        s_mov_b64 exec, -1
        """)
        vm = ["c0"] * 10 + ["c1"] * 10 + ["c2"] * 10 + ["c3"] * 10 + ["g"]

        def reads(n):
            c, ks = divmod(n, 4)
            st = c % 4
            f = FR[n % 2]
            wa = 12 + st // 2
            wo = (st % 2) * WS_ + ks * 2048

            def wr(s, j):
                return f"ds_read_b64_tr_b16 {vr(f + 8 + 4 * s + 2 * j, 2)}, v{wa} offset:{wo + s * 8192 + j * 512}"

            def xr(rt):
                return f"ds_read_b128 {vr(f + 4 * rt, 4)}, v{8 + ks} offset:{st * XS + rt * 4096}"
            return [xr(0), wr(0, 0), wr(0, 1), xr(1), wr(1, 0), wr(1, 1), wr(2, 0), wr(2, 1)]

        def mfmas(n):
            f = FR[n % 2]
            out = []
            for s in range(3):
                for rt in range(2):
                    d = vr(acc(rt, s), 16)
                    cin = "0" if (n == 0 and s != phi_seg) else d
                    x, w = vr(f + 4 * rt, 4), vr(f + 8 + 4 * s, 4)
                    A, B = (w, x) if orient[s] == "T" else (x, w)
                    out.append(f"v_mfma_f32_32x32x16_bf16 {d}, {A}, {B}, {cin}")
            return out

        for n in range(33):
            fill = []
            if n < 32 and n % 4 == 0:
                c = n // 4
                last = max(i for i, t in enumerate(vm) if t == f"c{c}")
                a(f"s_waitcnt vmcnt({len(vm) - 1 - last}) lgkmcnt(0)")
                a("s_barrier")
                fill = reads(n)
                if 1 <= c <= 4:
                    fill = fill + dma(c + 3)
                    vm.extend([f"c{c + 3}"] * 10)
            else:
                a("s_waitcnt lgkmcnt(0)")
                if n < 32:
                    fill = reads(n)
            if n == 0:
                for x in fill:
                    a(x)
            else:
                spread(a, mfmas(n - 1), fill, 3)

        a(f"""
        s_lshl_b32 s48, s32, 2
        s_lshl_b32 s52, s56, 1
        s_add_u32 s48, s48, s52
        s_lshl_b32 s58, s48, 16
        s_lshl_b32 s48, s34, 1
        s_add_u32 s48, s48, s55
        s_lshl_b32 s52, s48, 11
        s_add_u32 s59, s58, s52
        v_lshlrev_b32 v2, 4, v0
        v_add_u32 v2, s59, v2
        v_mov_b32 v14, {hx(LOG2E)}
        v_mov_b32 v15, {hx(1e-6)}
        """)
        tmp = [16]

        def newtmp(k):
            if tmp[0] + k > 64:
                tmp[0] = 16
            r = tmp[0]
            tmp[0] += k
            return r

        def phi(base):
            for h in range(0, 16, 4):
                t = newtmp(4)
                for i in range(4):
                    a(f"v_fmaak_f32 v{t + i}, v{base + h + i}, v14, {hx(-1e-6 * LOG2E)}")
                for i in range(4):
                    a(f"v_exp_f32_e64 v{t + i}, v{t + i} clamp")
                for i in range(4):
                    a(f"v_max_f32 v{base + h + i}, v{base + h + i}, v15")
                for i in range(4):
                    a(f"v_add_f32 v{base + h + i}, v{base + h + i}, v{t + i}")

        def pack(base, dst):
            for i in range(4):
                a(f"v_cvt_pk_bf16_f32 v{dst + i}, v{base + 2 * i}, v{base + 2 * i + 1}")

        def store_t(s, region, voff):
            a(f"s_mov_b32 s60, {region:#x}")
            a(f"s_mov_b32 s61, {region + 65536:#x}")
            for rt in range(2):
                for hsel in range(2):
                    t = newtmp(4)
                    pack(acc(rt, s) + 8 * hsel, t)
                    a(f"buffer_store_dwordx4 {vr(t, 4)}, v{voff}, s[24:27], s{60 + hsel} offen offset:{rt * 1024}{ST}")

        if typ == "x":
            a(f"v_mov_b32 v6, {hx(0.25 * LOG2E)}")
            for rt in range(2):
                for i in range(0, 16, 2):
                    b = acc(rt, 0) + i
                    a(f"v_pk_mul_f32 {vr(b, 2)}, {vr(b, 2)}, v[6:7] op_sel_hi:[1,0]")
            store_t(0, WS_Q, 2)
            for i in range(4):
                a(f"v_mov_b32 v{8 + i}, 0x3f803f80")
            KV, Z = 160, 176
            first = True
            for rt in range(2):
                phi(acc(rt, 1))
                for m in range(2):
                    pa, pb = 192 + 16 * rt + 8 * m, 196 + 16 * rt + 8 * m
                    pack(acc(rt, 1) + 8 * m, pa)
                    pack(acc(rt, 2) + 8 * m, pb)
                    a(f"v_mfma_f32_32x32x16_bf16 {vr(KV, 16)}, {vr(pa, 4)}, {vr(pb, 4)}, {'0' if first else vr(KV, 16)}")
                    a(f"v_mfma_f32_32x32x16_bf16 {vr(Z, 16)}, {vr(pa, 4)}, v[8:11], {'0' if first else vr(Z, 16)}")
                    first = False
            a(f"""
            v_lshlrev_b32 v3, 5, v0
            v_xor_b32 v4, 0x200, v3
            v_add_u32 v3, s59, v3
            v_add_u32 v4, s59, v4
            s_mov_b32 s60, {WS_KVP:#x}
            s_mov_b32 s61, {WS_KVP + 65536:#x}
            s_mov_b32 exec_lo, 0xffff0000
            s_mov_b32 exec_hi, 0xffff0000
            """)
            for i in range(8):
                a(f"v_mov_b32 v{KV + i}, v{Z + i}")
            a("s_mov_b32 exec_lo, 0xffff\ns_mov_b32 exec_hi, 0xffff")
            for i in range(8, 16):
                a(f"v_mov_b32 v{KV + i}, v{Z + i}")
            a("s_mov_b64 exec, -1")
            a(f"buffer_store_dwordx4 {vr(KV, 4)}, v3, s[24:27], s60 offen{ST}")
            a(f"buffer_store_dwordx4 {vr(KV + 4, 4)}, v3, s[24:27], s60 offen offset:16{ST}")
            a(f"buffer_store_dwordx4 {vr(KV + 8, 4)}, v4, s[24:27], s61 offen{ST}")
            a(f"buffer_store_dwordx4 {vr(KV + 12, 4)}, v4, s[24:27], s61 offen offset:16{ST}")
        else:
            a("""
            v_and_b32 v3, 0x33, v0
            v_bfe_u32 v4, v0, 2, 1
            v_lshl_or_b32 v3, v4, 3, v3
            v_bfe_u32 v4, v0, 3, 1
            v_lshl_or_b32 v3, v4, 2, v3
            v_lshlrev_b32 v3, 4, v3
            v_add_u32 v3, s59, v3
            v_and_b32 v4, 15, v0
            v_lshlrev_b32 v4, 4, v4
            v_lshrrev_b32 v5, 5, v0
            v_lshl_add_u32 v4, v5, 8, v4
            v_bfe_u32 v5, v0, 4, 1
            v_lshl_add_u32 v4, v5, 16, v4
            v_add_u32 v4, s59, v4
            """)
            store_t(0, WS_K, 3)
            a(f"s_mov_b32 s60, {WS_V:#x}")
            for rt in range(2):
                for m in range(2):
                    t = newtmp(4)
                    pack(acc(rt, 1) + 8 * m, t)
                    a(f"buffer_store_dwordx4 {vr(t, 4)}, v4, s[24:27], s60 offen offset:{rt * 1024 + m * 512}{ST}")
            for rt in range(2):
                phi(acc(rt, 2))
            store_t(2, WS_PQ, 2)
        a("s_endpgm")

    variant("x")
    a.label("K1_y")
    variant("y")
    a.label("K1_done")
    a("s_endpgm")
    a.pad()
    return a.text(), desc("qkv_kernel", 224, 64), "grid=(256,1,1) block=(256,1,1) lds=163840"


def gen_k2(opt):
    a = Asm()
    ST = opt.get("k2_store", "")
    Q, PQ, G, IDX = 4, 8, 12, 13
    KF = (16, 20)
    VA, VB = 24, (28, 32)
    S = (48, 64)
    O = 80
    KVP = 96
    BT = 128
    SCR = 131072
    a.label("attn_kernel")
    a("""
    s_cmp_ge_u32 s2, 256
    s_cbranch_scc1 K2_done
    s_load_dwordx2 s[44:45], s[0:1], 72
    v_lshrrev_b32 v1, 6, v0
    v_lshlrev_b32 v40, 2, v0               ; tid*4
    v_readfirstlane_b32 s33, v1            ; wave
    v_and_b32 v0, 63, v0
    s_and_b32 s46, s2, 7
    s_lshr_b32 s47, s2, 3
    s_lshl_b32 s34, s46, 2
    s_and_b32 s48, s47, 3
    s_add_u32 s34, s34, s48                ; head
    s_lshr_b32 s35, s47, 2
    s_lshl_b32 s36, s35, 3
    s_add_u32 s36, s36, s33
    s_lshl_b32 s37, s34, 16                ; head*65536
    s_lshl_b32 s38, s33, 10                ; wave*1024
    v_lshlrev_b32 v1, 4, v0                ; lane*16
    s_add_u32 s48, s37, s38
    v_add_u32 v3, s48, v1
    s_lshl_b32 s48, s36, 10
    s_add_u32 s48, s48, s37
    v_add_u32 v41, s48, v1
    v_add_u32 v42, s37, v40
    v_and_b32 v43, 31, v0
    v_lshlrev_b32 v43, 2, v43
    s_waitcnt lgkmcnt(0)
    """)
    srd(a, 24, 44, 45, WS_SIZE)
    vm = []
    a(f"buffer_load_dwordx4 {vr(Q, 4)}, v41, s[24:27], 0 offen")
    vm.append("c0")
    for c in range(8):
        for reg, lds in ((WS_K, 0), (WS_V, 65536)):
            a(f"s_mov_b32 s50, {reg + c * 8192:#x}")
            a(f"s_add_u32 m0, s38, {lds + c * 8192}")
            a("buffer_load_dwordx4 v3, s[24:27], s50 offen lds")
            vm.append(f"c{c}")
    a(f"""
    s_mov_b32 s50, {WS_PQ:#x}
    buffer_load_dwordx4 {vr(PQ, 4)}, v41, s[24:27], s50 offen
    s_lshl_b32 s50, s36, 7
    s_add_u32 s50, s50, {WS_G:#x}
    buffer_load_dword v{G}, v43, s[24:27], s50 offen
    """)
    vm += ["m", "m"]
    for p in range(0, 32, 2):
        a(f"s_mov_b32 s50, {WS_KVP + p * 2048:#x}")
        a(f"buffer_load_dword v{KVP + p}, v42, s[24:27], s50 offen")
        a(f"buffer_load_dword v{KVP + p + 1}, v42, s[24:27], s50 offen offset:2048")
        vm += ["m", "m"]
    a(f"""
    v_and_b32 v2, 15, v0
    v_lshlrev_b32 v2, 4, v2
    v_lshrrev_b32 v43, 5, v0
    v_lshl_add_u32 v2, v43, 8, v2
    v_add_u32 v2, 0x10000, v2
    v_mov_b32 v{IDX}, 0xdddddddd
    s_mov_b32 s40, 0xffff
    s_mov_b32 s41, 0xffff
    s_lshl_b32 s48, s36, 16
    s_lshl_b32 s49, s34, 10
    s_add_u32 s48, s48, s49
    v_add_u32 v41, s48, v1
    v_add_u32 v40, {SCR}, v40
    v_lshlrev_b32 v42, 5, v0
    v_add_u32 v42, {SCR}, v42
    """)
    for i in range(12):
        a(f"v_mov_b32 v{VA + i}, 0x3f803f80")
    for i in range(16):
        a(f"v_mov_b32 v{O + i}, 0")

    def wait_chunks(upto):
        last = max(i for i, t in enumerate(vm) if t in [f"c{c}" for c in range(upto + 1)])
        return len(vm) - 1 - last

    def kread(t):
        return f"ds_read_b128 {vr(KF[t % 2], 4)}, v1 offset:{t * 1024}"

    def vread(t):
        return (f"s_mov_b64 exec, s[40:41]\n"
                f"ds_read_b128 {vr(VA, 4)}, v2 offset:{t * 1024}\n"
                f"ds_read_b128 {vr(VB[t % 2], 4)}, v2 offset:{t * 1024 + 512}\n"
                f"s_mov_b64 exec, -1")

    def qk(t):
        return f"v_mfma_f32_32x32x16_bf16 {vr(S[t % 2], 16)}, {vr(KF[t % 2], 4)}, {vr(Q, 4)}, 0"

    def pv(t, m):
        A = VA if m == 0 else VB[t % 2]
        return f"v_smfmac_f32_32x32x32_bf16 {vr(O, 16)}, {vr(A, 4)}, {vr(S[t % 2] + 8 * m, 8)}, v{IDX}"

    def ex(t, lo, hi):
        for i in range(lo, hi):
            a(f"v_exp_f32 v{S[t % 2] + i}, v{S[t % 2] + i}")

    a(f"s_waitcnt vmcnt({wait_chunks(0)})")
    a("s_barrier")
    a(kread(0)); a(kread(1)); a(vread(0))
    a("s_waitcnt lgkmcnt(3)")
    a(qk(0))
    LAST = 14
    for t in range(64):
        ex(t, 0, 2)
        if t > 0:
            a(pv(t - 1, 1))
        ex(t, 2, 6)
        a("s_waitcnt lgkmcnt(0)")
        if t < 63:
            a(qk(t + 1))
        if t == LAST + 1:
            for i in range(4):
                a(f"v_cvt_pk_bf16_f32 v{BT + 8 + i}, v{BT + 2 * i}, v{BT + 2 * i + 1}")
        ex(t, 6, 10)
        a(pv(t, 0))
        if t == 6:
            a(f"s_waitcnt vmcnt({wait_chunks(1)})")
            a("s_barrier")
        if t == LAST:
            a("s_waitcnt vmcnt(0)")
            n = 32
            while n > 2:
                for i in range(0, n // 2, 2):
                    a(f"v_pk_add_f32 {vr(KVP + i, 2)}, {vr(KVP + i, 2)}, {vr(KVP + n // 2 + i, 2)}")
                n //= 2
            a(f"v_add_f32 v{KVP}, v{KVP}, v{KVP + 1}")
            a(f"ds_write_b32 v40, v{KVP}")
            a("s_waitcnt lgkmcnt(0)")
            a("s_barrier")
            a(f"ds_read_b128 {vr(BT, 4)}, v42")
            a(f"ds_read_b128 {vr(BT + 4, 4)}, v42 offset:16")
        if t + 2 < 64:
            a(kread(t + 2))
        if t + 1 < 64:
            a(vread(t + 1))
        ex(t, 10, 13)
        if t == LAST + 1:
            a(f"v_mfma_f32_32x32x16_bf16 {vr(BT + 16, 16)}, {vr(BT + 8, 4)}, {vr(PQ, 4)}, 0")
        ex(t, 13, 16)
        if t == LAST + 2:
            D = BT + 16
            a(f"""
            v_add_f32 v{BT}, {hx(1e-6)}, v{D + 8}
            v_rcp_f32 v{BT}, v{BT}
            v_sub_f32 v{BT + 1}, 1.0, v{G}
            v_mul_f32 v{BT}, v{BT}, v{BT + 1}
            """)
            for i in range(0, 8, 2):
                a(f"v_pk_mul_f32 {vr(D + i, 2)}, {vr(D + i, 2)}, {vr(BT, 2)} op_sel_hi:[1,0]")
            for i in range(4):
                a(f"v_cvt_pk_bf16_f32 v{BT + 4 + i}, v{D + 2 * i}, v{D + 2 * i + 1}")
            a(f"s_mov_b32 s50, {WS_O + 32768:#x}")
            a(f"buffer_store_dwordx4 {vr(BT + 4, 4)}, v41, s[24:27], s50 offen{ST}")
    a(pv(63, 1))
    a(f"""
    s_mov_b32 s51, {hx(2.0 ** -16)}
    s_mov_b32 s52, {hx(2.0 ** 48)}
    v_mov_b32 v16, v{O + 8}
    """)
    for i in range(8):
        a(f"v_fma_f32 v16, v{O + i}, 0, v16")
    a("""
    v_cmp_le_f32 s[42:43], s51, v16
    v_cmp_ge_f32 vcc, s52, v16
    s_and_b64 vcc, vcc, s[42:43]
    s_cmp_eq_u64 vcc, -1
    s_cbranch_scc0 K2_exact
    """)
    a.label("K2_fin")
    a(f"""
    v_rcp_f32 v16, v{O + 8}
    s_mov_b32 s50, {WS_O:#x}
    v_mul_f32 v16, v16, v{G}
    """)
    for i in range(0, 8, 2):
        a(f"v_pk_mul_f32 {vr(O + i, 2)}, {vr(O + i, 2)}, v[16:17] op_sel_hi:[1,0]")
    for i in range(4):
        a(f"v_cvt_pk_bf16_f32 v{20 + i}, v{O + 2 * i}, v{O + 2 * i + 1}")
    a(f"buffer_store_dwordx4 v[20:23], v41, s[24:27], s50 offen{ST}")
    a.label("K2_done")
    a("s_endpgm")

    C = 96
    a.label("K2_exact")
    a("""
    v_mov_b32 v44, v1
    v_mov_b32 v45, 0xff800000
    s_mov_b32 s53, 64
    """)
    a.label("K2_max")
    a(f"""
    ds_read_b128 {vr(KF[0], 4)}, v44
    v_add_u32 v44, 0x400, v44
    s_waitcnt lgkmcnt(0)
    v_mfma_f32_32x32x16_bf16 {vr(S[0], 16)}, {vr(KF[0], 4)}, {vr(Q, 4)}, 0
    """)
    for i in range(0, 16, 2):
        a(f"v_max3_f32 v45, v45, v{S[0] + i}, v{S[0] + i + 1}")
    a("""
    s_sub_u32 s53, s53, 1
    s_cmp_lg_u32 s53, 0
    s_cbranch_scc1 K2_max
    v_mov_b32 v46, v45
    v_permlane32_swap_b32 v45, v46
    v_max_f32 v45, v45, v46
    v_mov_b32 v44, v1
    v_mov_b32 v46, v2
    s_mov_b32 s53, 64
    """)
    for i in range(16):
        a(f"v_sub_f32 v{C + i}, 0, v45")
        a(f"v_mov_b32 v{O + i}, 0")
    a.label("K2_sum")
    a(f"""
    ds_read_b128 {vr(KF[0], 4)}, v44
    s_mov_b64 exec, s[40:41]
    ds_read_b128 {vr(VA, 4)}, v46
    ds_read_b128 {vr(VB[0], 4)}, v46 offset:512
    s_mov_b64 exec, -1
    v_add_u32 v44, 0x400, v44
    v_add_u32 v46, 0x400, v46
    s_waitcnt lgkmcnt(0)
    v_mfma_f32_32x32x16_bf16 {vr(S[0], 16)}, {vr(KF[0], 4)}, {vr(Q, 4)}, {vr(C, 16)}
    """)
    ex(0, 0, 16)
    a(pv(0, 0)); a(pv(0, 1))
    a("""
    s_sub_u32 s53, s53, 1
    s_cmp_lg_u32 s53, 0
    s_cbranch_scc1 K2_sum
    s_nop 15
    s_branch K2_fin
    """)
    a.pad()
    return a.text(), desc("attn_kernel", 160, 64), "grid=(256,1,1) block=(512,1,1) lds=133120"


def gen_k3(opt):
    a = Asm()
    ACC = 48
    FR = (16, 32)
    a.label("oproj_kernel")
    a("""
    s_cmp_ge_u32 s2, 256
    s_cbranch_scc1 K3_done
    s_load_dwordx2 s[36:37], s[0:1], 16
    s_load_dwordx2 s[38:39], s[0:1], 40
    s_load_dwordx2 s[40:41], s[0:1], 56
    s_load_dwordx2 s[44:45], s[0:1], 72
    v_lshrrev_b32 v1, 6, v0
    v_and_b32 v0, 63, v0
    v_readfirstlane_b32 s33, v1            ; wave
    s_and_b32 s46, s2, 7
    s_lshr_b32 s47, s2, 3
    s_lshl_b32 s34, s46, 2
    s_lshr_b32 s48, s47, 3
    s_add_u32 s34, s34, s48
    s_and_b32 s35, s47, 7
    s_lshl_b32 s50, s33, 12                ; wave*4096
    s_and_b32 s55, s33, 1
    s_lshr_b32 s56, s33, 1
    s_lshl_b32 s48, s34, 1
    s_add_u32 s48, s48, s56
    s_lshl_b32 s48, s48, 16
    s_lshl_b32 s49, s55, 12
    s_add_u32 s48, s48, s49
    v_lshlrev_b32 v1, 4, v0
    v_add_u32 v2, s48, v1
    v_lshrrev_b32 v14, 3, v0
    v_bfe_u32 v15, v0, 4, 1
    v_lshlrev_b32 v15, 2, v15
    v_and_b32 v16, 7, v0
    v_xor_b32 v16, v16, v15
    v_lshlrev_b32 v16, 4, v16
    v_lshl_add_u32 v4, v14, 10, v16
    s_lshl_b32 s48, s33, 15
    s_lshl_b32 s49, s35, 7
    s_add_u32 s48, s48, s49
    v_add_u32 v4, s48, v4
    v_add_u32 v5, 0x2000, v4
    v_add_u32 v6, 0x4000, v4
    v_add_u32 v7, 0x6000, v4
    s_waitcnt lgkmcnt(0)
    """)
    srd(a, 8, 36, 37, 512 * 1024)
    srd(a, 12, 38, 39, 512 * 1024)
    srd(a, 16, 40, 41, 2 << 20)
    srd(a, 24, 44, 45, WS_SIZE)

    def dma(c):
        st = c % 4
        w = 8 if c < 4 else 12
        g = []
        for i in range(4):
            pre = (f"s_mov_b32 s53, {WS_O + c * 8192:#x}\ns_mov_b32 s54, {(c % 4) * 131072:#x}\n"
                   f"s_add_u32 m0, s50, {st * 16384}\n") if i == 0 else ""
            g.append(pre + f"buffer_load_dwordx4 v2, s[24:27], s53 offen offset:{i * 1024} lds")
        for i in range(4):
            g.append(f"s_add_u32 m0, s50, {65536 + st * 16384 + i * 1024}\n"
                     f"buffer_load_dwordx4 v{4 + i}, s[{w}:{w + 3}], s54 offen lds")
        return g

    vm = []
    for c in range(4):
        for g in dma(c):
            a(g)
        vm += [f"c{c}"] * 8
    a("""
    s_lshl_b32 s48, s55, 13
    v_add_u32 v8, s48, v1
    v_bfe_u32 v14, v0, 2, 2
    v_lshlrev_b32 v9, 7, v14
    v_lshrrev_b32 v15, 5, v0
    v_lshl_add_u32 v9, v15, 9, v9
    v_lshrrev_b32 v14, 1, v14
    v_xor_b32 v14, s56, v14
    v_lshl_add_u32 v9, v14, 6, v9
    v_bfe_u32 v14, v0, 4, 1
    v_lshl_add_u32 v9, v14, 5, v9
    v_and_b32 v14, 1, v0
    v_lshl_add_u32 v9, v14, 4, v9
    v_bfe_u32 v14, v0, 1, 1
    v_lshl_add_u32 v9, v14, 3, v9
    v_add_u32 v9, 0x10000, v9
    v_and_b32 v14, 31, v0
    v_lshlrev_b32 v10, 10, v14
    v_lshl_add_u32 v10, v15, 4, v10
    s_lshl_b32 s48, s34, 1
    s_add_u32 s48, s48, s55
    s_lshl_b32 s48, s48, 15
    s_lshl_b32 s49, s35, 7
    s_add_u32 s48, s48, s49
    s_lshl_b32 s49, s56, 6
    s_add_u32 s48, s48, s49
    v_add_u32 v10, s48, v10
    """)

    def reads(n):
        c, pk = divmod(n, 4)
        st = c % 4
        f = FR[n % 2]
        out = []
        for u in range(2):
            ks = 2 * pk + u
            out.append(f"ds_read_b128 {vr(f + 8 * u, 4)}, v8 offset:{st * 16384 + ks * 1024}")
            for j in range(2):
                out.append(f"ds_read_b64_tr_b16 {vr(f + 8 * u + 4 + 2 * j, 2)}, v9 offset:{st * 16384 + ks * 2048 + j * 1024}")
        return out

    def mfmas(n):
        f = FR[n % 2]
        d = vr(ACC, 16)
        return [f"v_mfma_f32_32x32x16_bf16 {d}, {vr(f + 8 * u + 4, 4)}, {vr(f + 8 * u, 4)}, {'0' if (n == 0 and u == 0) else d}"
                for u in range(2)]

    for n in range(33):
        fill = []
        if n < 32 and n % 4 == 0:
            c = n // 4
            last = max(i for i, t in enumerate(vm) if t == f"c{c}")
            a(f"s_waitcnt vmcnt({len(vm) - 1 - last}) lgkmcnt(0)")
            a("s_barrier")
            fill = reads(n)
            if 1 <= c <= 4:
                fill = fill + dma(c + 3)
                vm.extend([f"c{c + 3}"] * 8)
        else:
            a("s_waitcnt lgkmcnt(0)")
            if n < 32:
                fill = reads(n)
        if n == 0:
            for x in fill:
                a(x)
        else:
            spread(a, mfmas(n - 1), fill, 6)
    for i in range(8):
        a(f"v_cvt_pk_bf16_f32 v{16 + i}, v{ACC + 2 * i}, v{ACC + 2 * i + 1}")
    a("buffer_store_dwordx4 v[16:19], v10, s[16:19], 0 offen")
    a("buffer_store_dwordx4 v[20:23], v10, s[16:19], 0 offen offset:32")
    a.label("K3_done")
    a("s_endpgm")
    a.pad()
    return a.text(), desc("oproj_kernel", 64, 64), "grid=(256,1,1) block=(256,1,1) lds=131072"


HEADER = """; Kernarg layout (80 bytes, pointers only, base s[0:1]):
"""


def build(opt=None):
    opt = opt or {}
    ks = [("qkv_kernel", gen_k1(opt)), ("attn_kernel", gen_k2(opt)), ("oproj_kernel", gen_k3(opt))]
    order = opt.get("order", [0, 1, 2])
    out = HEADER
    for i in order:
        out += f"; @launch kernel={ks[i][0]} {ks[i][1][2]}\n"
    out += '.amdgcn_target "amdgcn-amd-amdhsa--gfx950"\n.text\n'
    for name, (body, _, _) in ks:
        out += f".globl {name}\n.p2align 8\n.type {name},@function\n{body}"
    out += '.section .rodata,"a"\n'
    for name, (_, d, _) in ks:
        out += ".p2align 6\n" + d
    return out


if __name__ == "__main__":
    path = sys.argv[1] if len(sys.argv) > 1 else f"cdna_kernels/{NAME}.s"
    opt = {}
    for kv in sys.argv[2:]:
        k, v = kv.split("=", 1)
        opt[k] = eval(v)
    open(path, "w").write(build(opt))
```

```python
import struct
import sys
from asmlib import Asm

NAME = "gated_mix__mha_block__linear_attn_block__prompt"

WS_Q = 0
WS_K = 2 << 20
WS_V = 4 << 20
WS_PQ = 6 << 20
WS_KVP = 8 << 20
WS_G = 10 << 20
WS_O = 11 << 20
WS_SIZE = 16 << 20

LOG2E = 1.4426950408889634


def f2u(x):
    return struct.unpack("<I", struct.pack("<f", x))[0]


def hx(x):
    return f"0x{f2u(x):08x}"


def vr(b, n):
    return f"v[{b}:{b + n - 1}]" if n > 1 else f"v{b}"


def srd(a, d, lo, hi, size):
    a(f"s_mov_b32 s{d}, s{lo}")
    a(f"s_mov_b32 s{d + 1}, s{hi}")
    a(f"s_mov_b32 s{d + 2}, {size:#x}")
    a(f"s_mov_b32 s{d + 3}, 0x00020000")


def desc(name, vgpr, sgpr):
    acc = (vgpr + 3) // 4 * 4
    return f""".amdhsa_kernel {name}
  .amdhsa_next_free_vgpr {vgpr}
  .amdhsa_next_free_sgpr {sgpr}
  .amdhsa_accum_offset {acc}
  .amdhsa_group_segment_fixed_size 0
  .amdhsa_kernarg_size 80
  .amdhsa_user_sgpr_count 2
  .amdhsa_user_sgpr_kernarg_segment_ptr 1
  .amdhsa_system_sgpr_workgroup_id_x 1
.end_amdhsa_kernel
"""


WS_STAMP = 15 << 20


class Stamps:
    def __init__(self, a, opt, kid):
        self.a, self.on, self.kid, self.n = a, opt.get("stamps", False), kid, 0

    def start(self):
        if self.on:
            self.a("s_memrealtime s[96:97]")
            self()

    def __call__(self):
        if self.on:
            self.a(f"s_memtime s[{66 + 2 * self.n}:{67 + 2 * self.n}]")
            self.n += 1
            assert self.n <= 14

    def finish(self, waves, v):
        if not self.on:
            return
        a = self.a
        a("s_waitcnt vmcnt(0)")
        self()
        a("s_memrealtime s[98:99]")
        a("s_waitcnt lgkmcnt(0)")
        a(f"s_mul_i32 s64, s2, {waves}")
        a("s_add_u32 s64, s64, s33")
        a("s_lshl_b32 s64, s64, 6")
        a(f"s_add_u32 s64, s64, {WS_STAMP + self.kid * 262144:#x}")
        a(f"v_mov_b32 v{v}, 0")
        for i in range(16):
            src = "s96" if i == 14 else "s98" if i == 15 else (f"s{66 + 2 * i}" if i < self.n else "0")
            a(f"v_mov_b32 v{v + 1}, {src}")
            a(f"buffer_store_dword v{v + 1}, v{v}, s[24:27], s64 offen offset:{4 * i}")
        a("s_waitcnt vmcnt(0)")


def spread(a, mfmas, fillers, per_gap):
    j = 0
    for n, m in enumerate(mfmas):
        a(m)
        k = per_gap if n < len(mfmas) - 1 else len(fillers)
        for _ in range(k):
            if j < len(fillers):
                a(fillers[j]); j += 1


def gen_k1(opt):
    a = Asm()
    ST = opt.get("k1_store", "")
    XS, WS_, WBASE = 16384, 24576, 65536
    ACC = 64
    FR = (16, 36)

    def acc(rt, s):
        return ACC + 16 * (2 * s + rt)

    a.label("qkv_kernel")
    st_ = Stamps(a, opt, 0)
    st_.start()
    a("""
    s_cmp_ge_u32 s2, 256
    s_cbranch_scc1 K1_done
    s_load_dwordx4 s[36:39], s[0:1], 0
    s_load_dwordx2 s[40:41], s[0:1], 32
    s_load_dwordx2 s[42:43], s[0:1], 48
    s_load_dwordx2 s[44:45], s[0:1], 72
    v_lshrrev_b32 v1, 6, v0
    v_and_b32 v0, 63, v0
    v_readfirstlane_b32 s33, v1            ; wave
    s_and_b32 s46, s2, 7
    s_lshr_b32 s47, s2, 3
    s_and_b32 s34, s46, 1
    s_lshl_b32 s34, s34, 3
    s_and_b32 s48, s47, 7
    s_add_u32 s34, s34, s48
    s_lshr_b32 s35, s46, 1
    s_lshl_b32 s35, s35, 2
    s_lshr_b32 s48, s47, 3
    s_add_u32 s35, s35, s48
    s_lshr_b32 s32, s35, 1
    s_lshl_b32 s49, s32, 7
    s_lshl_b32 s50, s33, 12                ; wave * 4096
    s_lshl_b32 s51, s33, 11                ; wave * 2048
    s_and_b32 s55, s33, 1
    s_lshr_b32 s56, s33, 1
    """)
    a("""
    v_lshrrev_b32 v14, 3, v0
    v_lshrrev_b32 v15, 4, v0
    v_and_b32 v16, 7, v0
    v_xor_b32 v16, v16, v15
    v_lshlrev_b32 v16, 4, v16
    s_lshl_b32 s48, s34, 2
    s_add_u32 s48, s48, s33
    s_lshl_b32 s48, s48, 15
    v_lshl_add_u32 v2, v14, 10, v16
    v_add_u32 v2, s48, v2
    v_xor_b32 v3, 64, v2
    v_add_u32 v3, 0x2000, v3
    v_add_u32 v4, 0x4000, v2
    v_add_u32 v5, 0x4000, v3
    """)
    a("""
    v_and_b32 v17, 1, v15
    v_lshlrev_b32 v17, 2, v17
    v_and_b32 v16, 7, v0
    v_xor_b32 v16, v16, v17
    v_lshlrev_b32 v16, 4, v16
    v_mul_u32_u24 v6, 0xc00, v14
    v_add_u32 v6, v6, v16
    s_mul_i32 s48, s33, 49152
    v_add_u32 v6, s48, v6
    v_add_u32 v7, 0x6000, v6
    """)
    a("""
    v_and_b32 v18, 31, v0
    v_lshrrev_b32 v19, 5, v0
    v_lshlrev_b32 v161, 5, v18
    s_lshl_b32 s48, s2, 3
    s_lshl_b32 s52, s33, 1
    s_add_u32 s48, s48, s52
    v_add_u32 v162, s48, v19
    v_lshl_add_u32 v160, v162, 10, v161
    v_lshlrev_b32 v162, 2, v162
    s_waitcnt lgkmcnt(0)
    """)
    srd(a, 8, 36, 37, 2 << 20)
    srd(a, 28, 42, 43, 1024)
    srd(a, 24, 44, 45, WS_SIZE)
    a("""
    buffer_load_dwordx4 v[164:167], v160, s[8:11], 0 offen
    buffer_load_dwordx4 v[168:171], v160, s[8:11], 0 offen offset:16
    buffer_load_dwordx4 v[172:175], v161, s[28:31], 0 offen
    buffer_load_dwordx4 v[176:179], v161, s[28:31], 0 offen offset:16
    s_bitcmp1_b32 s35, 0
    s_cbranch_scc1 K1_y
    """)

    def variant(typ):
        st_.n = 1
        if typ == "x":
            segs = [(38, 0), (40, 1024), (40, 2048)]
            orient = "TNN"
            phi_seg = 1
        else:
            segs = [(38, 1024), (38, 2048), (40, 0)]
            orient = "TNT"
            phi_seg = 2
        for s, (p, off) in enumerate(segs):
            d = 12 + 4 * s
            a(f"s_add_u32 s48, s49, {off}")
            a(f"s_add_u32 s{d}, s{p}, s48")
            a(f"s_addc_u32 s{d + 1}, s{p + 1}, 0")
            a(f"s_sub_u32 s{d + 2}, {512 * 3072:#x}, s48")
            a(f"s_mov_b32 s{d + 3}, 0x00020000")

        def dma(c):
            st = c % 4
            g = []
            first = f"s_movk_i32 s53, {c * 128}\ns_mov_b32 s54, {c * 64 * 3072:#x}\n"
            for i in range(4):
                g.append((first if i == 0 else "") +
                         f"s_add_u32 m0, s50, {st * XS + i * 1024}\n"
                         f"buffer_load_dwordx4 v{2 + i}, s[8:11], s53 offen lds")
            for s in range(3):
                for jq in range(2):
                    g.append(f"s_add_u32 m0, s51, {WBASE + st * WS_ + s * 8192 + jq * 1024}\n"
                             f"buffer_load_dwordx4 v{6 + jq}, s[{12 + 4 * s}:{15 + 4 * s}], s54 offen lds")
            return g

        for c in range(4):
            for g in dma(c):
                a(g)
        st_()
        a("""
        v_lshrrev_b32 v14, 1, v18
        v_and_b32 v14, 7, v14
        v_xor_b32 v14, v14, v19
        v_lshlrev_b32 v14, 4, v14
        v_lshl_add_u32 v8, v18, 7, v14
        s_lshl_b32 s48, s55, 13
        v_add_u32 v8, s48, v8
        v_xor_b32 v9, 32, v8
        v_xor_b32 v10, 64, v8
        v_xor_b32 v11, 0x60, v8
        v_bfe_u32 v14, v0, 2, 2
        v_lshlrev_b32 v12, 7, v14
        v_lshl_add_u32 v12, v19, 10, v12
        v_lshrrev_b32 v14, 1, v14
        v_xor_b32 v14, s56, v14
        v_lshl_add_u32 v12, v14, 6, v12
        v_bfe_u32 v14, v0, 4, 1
        v_lshl_add_u32 v12, v14, 5, v12
        v_and_b32 v14, 3, v0
        v_lshl_add_u32 v12, v14, 3, v12
        v_add_u32 v12, 0x10000, v12
        v_add_u32 v13, 0xc000, v12
        """)
        for rt in range(2):
            for i in range(16):
                a(f"v_mov_b32 v{acc(rt, phi_seg) + i}, {hx(1e-6)}")
        a("s_waitcnt vmcnt(40)")
        a("v_dot2_f32_bf16 v163, v164, v172, 0")
        for i in range(1, 8):
            a(f"v_dot2_f32_bf16 v163, v{164 + i}, v{172 + i}, v163")
        for r in (8, 4, 2, 1):
            a(f"v_add_f32_dpp v163, v163, v163 row_ror:{r} row_mask:0xf bank_mask:0xf")
        a(f"""
        v_mov_b32 v164, v163
        v_permlane16_swap_b32 v163, v164
        v_add_f32 v163, v163, v164
        v_mul_f32 v163, {hx(-LOG2E)}, v163
        v_exp_f32 v163, v163
        v_add_f32 v163, 1.0, v163
        v_rcp_f32 v163, v163
        s_mov_b32 s57, {WS_G:#x}
        s_mov_b32 exec_lo, 1
        s_mov_b32 exec_hi, 1
        buffer_store_dword v163, v162, s[24:27], s57 offen
        s_mov_b64 exec, -1
        """)
        vm = ["c0"] * 10 + ["c1"] * 10 + ["c2"] * 10 + ["c3"] * 10 + ["g"]

        def reads(n):
            c, ks = divmod(n, 4)
            st = c % 4
            f = FR[n % 2]
            wa = 12 + st // 2
            wo = (st % 2) * WS_ + ks * 2048

            def wr(s, j):
                return f"ds_read_b64_tr_b16 {vr(f + 8 + 4 * s + 2 * j, 2)}, v{wa} offset:{wo + s * 8192 + j * 512}"

            def xr(rt):
                return f"ds_read_b128 {vr(f + 4 * rt, 4)}, v{8 + ks} offset:{st * XS + rt * 4096}"
            return [xr(0), wr(0, 0), wr(0, 1), xr(1), wr(1, 0), wr(1, 1), wr(2, 0), wr(2, 1)]

        def mfmas(n):
            f = FR[n % 2]
            out = []
            for s in range(3):
                for rt in range(2):
                    d = vr(acc(rt, s), 16)
                    cin = "0" if (n == 0 and s != phi_seg) else d
                    x, w = vr(f + 4 * rt, 4), vr(f + 8 + 4 * s, 4)
                    A, B = (w, x) if orient[s] == "T" else (x, w)
                    out.append(f"v_mfma_f32_32x32x16_bf16 {d}, {A}, {B}, {cin}")
            return out

        for n in range(33):
            fill = []
            if n < 32 and n % 4 == 0:
                c = n // 4
                last = max(i for i, t in enumerate(vm) if t == f"c{c}")
                a(f"s_waitcnt vmcnt({len(vm) - 1 - last}) lgkmcnt(0)")
                a("s_barrier")
                st_()
                fill = reads(n)
                if 1 <= c <= 4:
                    fill = fill + dma(c + 3)
                    vm.extend([f"c{c + 3}"] * 10)
            else:
                a("s_waitcnt lgkmcnt(0)")
                if n < 32:
                    fill = reads(n)
            if n == 0:
                for x in fill:
                    a(x)
            else:
                spread(a, mfmas(n - 1), fill, 3)

        st_()
        a(f"""
        s_lshl_b32 s48, s32, 2
        s_lshl_b32 s52, s56, 1
        s_add_u32 s48, s48, s52
        s_lshl_b32 s58, s48, 16
        s_lshl_b32 s48, s34, 1
        s_add_u32 s48, s48, s55
        s_lshl_b32 s52, s48, 11
        s_add_u32 s59, s58, s52
        v_lshlrev_b32 v2, 4, v0
        v_add_u32 v2, s59, v2
        v_mov_b32 v14, {hx(LOG2E)}
        v_mov_b32 v15, {hx(1e-6)}
        """)
        tmp = [16]

        def newtmp(k):
            if tmp[0] + k > 64:
                tmp[0] = 16
            r = tmp[0]
            tmp[0] += k
            return r

        def phi(base):
            for h in range(0, 16, 4):
                t = newtmp(4)
                for i in range(4):
                    a(f"v_fmaak_f32 v{t + i}, v{base + h + i}, v14, {hx(-1e-6 * LOG2E)}")
                for i in range(4):
                    a(f"v_exp_f32_e64 v{t + i}, v{t + i} clamp")
                for i in range(4):
                    a(f"v_max_f32 v{base + h + i}, v{base + h + i}, v15")
                for i in range(4):
                    a(f"v_add_f32 v{base + h + i}, v{base + h + i}, v{t + i}")

        def pack(base, dst):
            for i in range(4):
                a(f"v_cvt_pk_bf16_f32 v{dst + i}, v{base + 2 * i}, v{base + 2 * i + 1}")

        def store_t(s, region, voff):
            a(f"s_mov_b32 s60, {region:#x}")
            a(f"s_mov_b32 s61, {region + 65536:#x}")
            for rt in range(2):
                for hsel in range(2):
                    t = newtmp(4)
                    pack(acc(rt, s) + 8 * hsel, t)
                    a(f"buffer_store_dwordx4 {vr(t, 4)}, v{voff}, s[24:27], s{60 + hsel} offen offset:{rt * 1024}{ST}")

        if typ == "x":
            a(f"v_mov_b32 v6, {hx(0.25 * LOG2E)}")
            for rt in range(2):
                for i in range(0, 16, 2):
                    b = acc(rt, 0) + i
                    a(f"v_pk_mul_f32 {vr(b, 2)}, {vr(b, 2)}, v[6:7] op_sel_hi:[1,0]")
            store_t(0, WS_Q, 2)
            for i in range(4):
                a(f"v_mov_b32 v{8 + i}, 0x3f803f80")
            KV, Z = 160, 176
            first = True
            for rt in range(2):
                phi(acc(rt, 1))
                for m in range(2):
                    pa, pb = 192 + 16 * rt + 8 * m, 196 + 16 * rt + 8 * m
                    pack(acc(rt, 1) + 8 * m, pa)
                    pack(acc(rt, 2) + 8 * m, pb)
                    a(f"v_mfma_f32_32x32x16_bf16 {vr(KV, 16)}, {vr(pa, 4)}, {vr(pb, 4)}, {'0' if first else vr(KV, 16)}")
                    a(f"v_mfma_f32_32x32x16_bf16 {vr(Z, 16)}, {vr(pa, 4)}, v[8:11], {'0' if first else vr(Z, 16)}")
                    first = False
            a(f"""
            v_lshlrev_b32 v3, 5, v0
            v_xor_b32 v4, 0x200, v3
            v_add_u32 v3, s59, v3
            v_add_u32 v4, s59, v4
            s_mov_b32 s60, {WS_KVP:#x}
            s_mov_b32 s61, {WS_KVP + 65536:#x}
            s_mov_b32 exec_lo, 0xffff0000
            s_mov_b32 exec_hi, 0xffff0000
            """)
            for i in range(8):
                a(f"v_mov_b32 v{KV + i}, v{Z + i}")
            a("s_mov_b32 exec_lo, 0xffff\ns_mov_b32 exec_hi, 0xffff")
            for i in range(8, 16):
                a(f"v_mov_b32 v{KV + i}, v{Z + i}")
            a("s_mov_b64 exec, -1")
            a(f"buffer_store_dwordx4 {vr(KV, 4)}, v3, s[24:27], s60 offen{ST}")
            a(f"buffer_store_dwordx4 {vr(KV + 4, 4)}, v3, s[24:27], s60 offen offset:16{ST}")
            a(f"buffer_store_dwordx4 {vr(KV + 8, 4)}, v4, s[24:27], s61 offen{ST}")
            a(f"buffer_store_dwordx4 {vr(KV + 12, 4)}, v4, s[24:27], s61 offen offset:16{ST}")
        else:
            a("""
            v_and_b32 v3, 0x33, v0
            v_bfe_u32 v4, v0, 2, 1
            v_lshl_or_b32 v3, v4, 3, v3
            v_bfe_u32 v4, v0, 3, 1
            v_lshl_or_b32 v3, v4, 2, v3
            v_lshlrev_b32 v3, 4, v3
            v_add_u32 v3, s59, v3
            v_and_b32 v4, 15, v0
            v_lshlrev_b32 v4, 4, v4
            v_lshrrev_b32 v5, 5, v0
            v_lshl_add_u32 v4, v5, 8, v4
            v_bfe_u32 v5, v0, 4, 1
            v_lshl_add_u32 v4, v5, 16, v4
            v_add_u32 v4, s59, v4
            """)
            store_t(0, WS_K, 3)
            a(f"s_mov_b32 s60, {WS_V:#x}")
            for rt in range(2):
                for m in range(2):
                    t = newtmp(4)
                    pack(acc(rt, 1) + 8 * m, t)
                    a(f"buffer_store_dwordx4 {vr(t, 4)}, v4, s[24:27], s60 offen offset:{rt * 1024 + m * 512}{ST}")
            for rt in range(2):
                phi(acc(rt, 2))
            store_t(2, WS_PQ, 2)
        st_()
        st_.finish(4, 2)
        a("s_endpgm")

    variant("x")
    a.label("K1_y")
    variant("y")
    a.label("K1_done")
    a("s_endpgm")
    a.pad()
    return a.text(), desc("qkv_kernel", 224, 100), "grid=(256,1,1) block=(256,1,1) lds=163840"


def gen_k2(opt):
    a = Asm()
    ST = opt.get("k2_store", "")
    Q, PQ, G, IDX = 4, 8, 12, 13
    KF = (16, 20)
    VA, VB = 24, (28, 32)
    S = (48, 64)
    O = 80
    KVP = 96
    BT = 128
    SCR = 131072
    a.label("attn_kernel")
    st_ = Stamps(a, opt, 1)
    st_.start()
    a("""
    s_cmp_ge_u32 s2, 256
    s_cbranch_scc1 K2_done
    s_load_dwordx2 s[44:45], s[0:1], 72
    v_lshrrev_b32 v1, 6, v0
    v_lshlrev_b32 v40, 2, v0               ; tid*4
    v_readfirstlane_b32 s33, v1            ; wave
    v_and_b32 v0, 63, v0
    s_and_b32 s46, s2, 7
    s_lshr_b32 s47, s2, 3
    s_lshl_b32 s34, s46, 2
    s_and_b32 s48, s47, 3
    s_add_u32 s34, s34, s48                ; head
    s_lshr_b32 s35, s47, 2
    s_lshl_b32 s36, s35, 3
    s_add_u32 s36, s36, s33
    s_lshl_b32 s37, s34, 16                ; head*65536
    s_lshl_b32 s38, s33, 10                ; wave*1024
    v_lshlrev_b32 v1, 4, v0                ; lane*16
    s_add_u32 s48, s37, s38
    v_add_u32 v3, s48, v1
    s_lshl_b32 s48, s36, 10
    s_add_u32 s48, s48, s37
    v_add_u32 v41, s48, v1
    v_add_u32 v42, s37, v40
    v_and_b32 v43, 31, v0
    v_lshlrev_b32 v43, 2, v43
    s_waitcnt lgkmcnt(0)
    """)
    srd(a, 24, 44, 45, WS_SIZE)
    vm = []
    a(f"buffer_load_dwordx4 {vr(Q, 4)}, v41, s[24:27], 0 offen")
    vm.append("c0")
    for c in range(8):
        for reg, lds in ((WS_K, 0), (WS_V, 65536)):
            a(f"s_mov_b32 s50, {reg + c * 8192:#x}")
            a(f"s_add_u32 m0, s38, {lds + c * 8192}")
            a("buffer_load_dwordx4 v3, s[24:27], s50 offen lds")
            vm.append(f"c{c}")
    a(f"""
    s_mov_b32 s50, {WS_PQ:#x}
    buffer_load_dwordx4 {vr(PQ, 4)}, v41, s[24:27], s50 offen
    s_lshl_b32 s50, s36, 7
    s_add_u32 s50, s50, {WS_G:#x}
    buffer_load_dword v{G}, v43, s[24:27], s50 offen
    """)
    vm += ["m", "m"]
    for p in range(0, 32, 2):
        a(f"s_mov_b32 s50, {WS_KVP + p * 2048:#x}")
        a(f"buffer_load_dword v{KVP + p}, v42, s[24:27], s50 offen")
        a(f"buffer_load_dword v{KVP + p + 1}, v42, s[24:27], s50 offen offset:2048")
        vm += ["m", "m"]
    a(f"""
    v_and_b32 v2, 15, v0
    v_lshlrev_b32 v2, 4, v2
    v_lshrrev_b32 v43, 5, v0
    v_lshl_add_u32 v2, v43, 8, v2
    v_add_u32 v2, 0x10000, v2
    v_mov_b32 v{IDX}, 0xdddddddd
    s_mov_b32 s40, 0xffff
    s_mov_b32 s41, 0xffff
    s_lshl_b32 s48, s36, 16
    s_lshl_b32 s49, s34, 10
    s_add_u32 s48, s48, s49
    v_add_u32 v41, s48, v1
    v_add_u32 v40, {SCR}, v40
    v_lshlrev_b32 v42, 5, v0
    v_add_u32 v42, {SCR}, v42
    """)
    for i in range(12):
        a(f"v_mov_b32 v{VA + i}, 0x3f803f80")
    for i in range(16):
        a(f"v_mov_b32 v{O + i}, 0")

    def wait_chunks(upto):
        last = max(i for i, t in enumerate(vm) if t in [f"c{c}" for c in range(upto + 1)])
        return len(vm) - 1 - last

    def kread(t):
        return f"ds_read_b128 {vr(KF[t % 2], 4)}, v1 offset:{t * 1024}"

    def vread(t):
        return (f"s_mov_b64 exec, s[40:41]\n"
                f"ds_read_b128 {vr(VA, 4)}, v2 offset:{t * 1024}\n"
                f"ds_read_b128 {vr(VB[t % 2], 4)}, v2 offset:{t * 1024 + 512}\n"
                f"s_mov_b64 exec, -1")

    def qk(t):
        return f"v_mfma_f32_32x32x16_bf16 {vr(S[t % 2], 16)}, {vr(KF[t % 2], 4)}, {vr(Q, 4)}, 0"

    def pv(t, m):
        A = VA if m == 0 else VB[t % 2]
        return f"v_smfmac_f32_32x32x32_bf16 {vr(O, 16)}, {vr(A, 4)}, {vr(S[t % 2] + 8 * m, 8)}, v{IDX}"

    def ex(t, lo, hi):
        for i in range(lo, hi):
            a(f"v_exp_f32 v{S[t % 2] + i}, v{S[t % 2] + i}")

    st_()
    a(f"s_waitcnt vmcnt({wait_chunks(0)})")
    a("s_barrier")
    st_()
    a(kread(0)); a(kread(1)); a(vread(0))
    a("s_waitcnt lgkmcnt(3)")
    a(qk(0))
    LAST = 14
    for t in range(64):
        if t in (6, 8, 14, 18, 32, 48):
            st_()
        ex(t, 0, 2)
        if t > 0:
            a(pv(t - 1, 1))
        ex(t, 2, 6)
        a("s_waitcnt lgkmcnt(0)")
        if t < 63:
            a(qk(t + 1))
        if t == LAST + 1:
            for i in range(4):
                a(f"v_cvt_pk_bf16_f32 v{BT + 8 + i}, v{BT + 2 * i}, v{BT + 2 * i + 1}")
        ex(t, 6, 10)
        a(pv(t, 0))
        if t == 6:
            a(f"s_waitcnt vmcnt({wait_chunks(1)})")
            a("s_barrier")
        if t == LAST:
            a("s_waitcnt vmcnt(0)")
            n = 32
            while n > 2:
                for i in range(0, n // 2, 2):
                    a(f"v_pk_add_f32 {vr(KVP + i, 2)}, {vr(KVP + i, 2)}, {vr(KVP + n // 2 + i, 2)}")
                n //= 2
            a(f"v_add_f32 v{KVP}, v{KVP}, v{KVP + 1}")
            a(f"ds_write_b32 v40, v{KVP}")
            a("s_waitcnt lgkmcnt(0)")
            a("s_barrier")
            a(f"ds_read_b128 {vr(BT, 4)}, v42")
            a(f"ds_read_b128 {vr(BT + 4, 4)}, v42 offset:16")
        if t + 2 < 64:
            a(kread(t + 2))
        if t + 1 < 64:
            a(vread(t + 1))
        ex(t, 10, 13)
        if t == LAST + 1:
            a(f"v_mfma_f32_32x32x16_bf16 {vr(BT + 16, 16)}, {vr(BT + 8, 4)}, {vr(PQ, 4)}, 0")
        ex(t, 13, 16)
        if t == LAST + 2:
            D = BT + 16
            a(f"""
            v_add_f32 v{BT}, {hx(1e-6)}, v{D + 8}
            v_rcp_f32 v{BT}, v{BT}
            v_sub_f32 v{BT + 1}, 1.0, v{G}
            v_mul_f32 v{BT}, v{BT}, v{BT + 1}
            """)
            for i in range(0, 8, 2):
                a(f"v_pk_mul_f32 {vr(D + i, 2)}, {vr(D + i, 2)}, {vr(BT, 2)} op_sel_hi:[1,0]")
            for i in range(4):
                a(f"v_cvt_pk_bf16_f32 v{BT + 4 + i}, v{D + 2 * i}, v{D + 2 * i + 1}")
            a(f"s_mov_b32 s50, {WS_O + 32768:#x}")
            a(f"buffer_store_dwordx4 {vr(BT + 4, 4)}, v41, s[24:27], s50 offen{ST}")
    a(pv(63, 1))
    st_()
    a(f"""
    s_mov_b32 s51, {hx(2.0 ** -16)}
    s_mov_b32 s52, {hx(2.0 ** 48)}
    v_mov_b32 v16, v{O + 8}
    """)
    for i in range(8):
        a(f"v_fma_f32 v16, v{O + i}, 0, v16")
    a("""
    v_cmp_le_f32 s[42:43], s51, v16
    v_cmp_ge_f32 vcc, s52, v16
    s_and_b64 vcc, vcc, s[42:43]
    s_cmp_eq_u64 vcc, -1
    s_cbranch_scc0 K2_exact
    """)
    a.label("K2_fin")
    a(f"""
    v_rcp_f32 v16, v{O + 8}
    s_mov_b32 s50, {WS_O:#x}
    v_mul_f32 v16, v16, v{G}
    """)
    for i in range(0, 8, 2):
        a(f"v_pk_mul_f32 {vr(O + i, 2)}, {vr(O + i, 2)}, v[16:17] op_sel_hi:[1,0]")
    for i in range(4):
        a(f"v_cvt_pk_bf16_f32 v{20 + i}, v{O + 2 * i}, v{O + 2 * i + 1}")
    a(f"buffer_store_dwordx4 v[20:23], v41, s[24:27], s50 offen{ST}")
    st_()
    st_.finish(8, 2)
    a.label("K2_done")
    a("s_endpgm")

    C = 96
    a.label("K2_exact")
    a("""
    v_mov_b32 v44, v1
    v_mov_b32 v45, 0xff800000
    s_mov_b32 s53, 64
    """)
    a.label("K2_max")
    a(f"""
    ds_read_b128 {vr(KF[0], 4)}, v44
    v_add_u32 v44, 0x400, v44
    s_waitcnt lgkmcnt(0)
    v_mfma_f32_32x32x16_bf16 {vr(S[0], 16)}, {vr(KF[0], 4)}, {vr(Q, 4)}, 0
    """)
    for i in range(0, 16, 2):
        a(f"v_max3_f32 v45, v45, v{S[0] + i}, v{S[0] + i + 1}")
    a("""
    s_sub_u32 s53, s53, 1
    s_cmp_lg_u32 s53, 0
    s_cbranch_scc1 K2_max
    v_mov_b32 v46, v45
    v_permlane32_swap_b32 v45, v46
    v_max_f32 v45, v45, v46
    v_mov_b32 v44, v1
    v_mov_b32 v46, v2
    s_mov_b32 s53, 64
    """)
    for i in range(16):
        a(f"v_sub_f32 v{C + i}, 0, v45")
        a(f"v_mov_b32 v{O + i}, 0")
    a.label("K2_sum")
    a(f"""
    ds_read_b128 {vr(KF[0], 4)}, v44
    s_mov_b64 exec, s[40:41]
    ds_read_b128 {vr(VA, 4)}, v46
    ds_read_b128 {vr(VB[0], 4)}, v46 offset:512
    s_mov_b64 exec, -1
    v_add_u32 v44, 0x400, v44
    v_add_u32 v46, 0x400, v46
    s_waitcnt lgkmcnt(0)
    v_mfma_f32_32x32x16_bf16 {vr(S[0], 16)}, {vr(KF[0], 4)}, {vr(Q, 4)}, {vr(C, 16)}
    """)
    ex(0, 0, 16)
    a(pv(0, 0)); a(pv(0, 1))
    a("""
    s_sub_u32 s53, s53, 1
    s_cmp_lg_u32 s53, 0
    s_cbranch_scc1 K2_sum
    s_nop 15
    s_branch K2_fin
    """)
    a.pad()
    return a.text(), desc("attn_kernel", 160, 100), "grid=(256,1,1) block=(512,1,1) lds=133120"


def gen_k3(opt):
    a = Asm()
    ACC = 48
    FR = (16, 32)
    a.label("oproj_kernel")
    st_ = Stamps(a, opt, 2)
    st_.start()
    a("""
    s_cmp_ge_u32 s2, 256
    s_cbranch_scc1 K3_done
    s_load_dwordx2 s[36:37], s[0:1], 16
    s_load_dwordx2 s[38:39], s[0:1], 40
    s_load_dwordx2 s[40:41], s[0:1], 56
    s_load_dwordx2 s[44:45], s[0:1], 72
    v_lshrrev_b32 v1, 6, v0
    v_and_b32 v0, 63, v0
    v_readfirstlane_b32 s33, v1            ; wave
    s_and_b32 s46, s2, 7
    s_lshr_b32 s47, s2, 3
    s_lshl_b32 s34, s46, 2
    s_lshr_b32 s48, s47, 3
    s_add_u32 s34, s34, s48
    s_and_b32 s35, s47, 7
    s_lshl_b32 s50, s33, 12                ; wave*4096
    s_and_b32 s55, s33, 1
    s_lshr_b32 s56, s33, 1
    s_lshl_b32 s48, s34, 1
    s_add_u32 s48, s48, s56
    s_lshl_b32 s48, s48, 16
    s_lshl_b32 s49, s55, 12
    s_add_u32 s48, s48, s49
    v_lshlrev_b32 v1, 4, v0
    v_add_u32 v2, s48, v1
    v_lshrrev_b32 v14, 3, v0
    v_bfe_u32 v15, v0, 4, 1
    v_lshlrev_b32 v15, 2, v15
    v_and_b32 v16, 7, v0
    v_xor_b32 v16, v16, v15
    v_lshlrev_b32 v16, 4, v16
    v_lshl_add_u32 v4, v14, 10, v16
    s_lshl_b32 s48, s33, 15
    s_lshl_b32 s49, s35, 7
    s_add_u32 s48, s48, s49
    v_add_u32 v4, s48, v4
    v_add_u32 v5, 0x2000, v4
    v_add_u32 v6, 0x4000, v4
    v_add_u32 v7, 0x6000, v4
    s_waitcnt lgkmcnt(0)
    """)
    srd(a, 8, 36, 37, 512 * 1024)
    srd(a, 12, 38, 39, 512 * 1024)
    srd(a, 16, 40, 41, 2 << 20)
    srd(a, 24, 44, 45, WS_SIZE)

    def dma(c):
        st = c % 4
        w = 8 if c < 4 else 12
        g = []
        for i in range(4):
            pre = (f"s_mov_b32 s53, {WS_O + c * 8192:#x}\ns_mov_b32 s54, {(c % 4) * 131072:#x}\n"
                   f"s_add_u32 m0, s50, {st * 16384}\n") if i == 0 else ""
            g.append(pre + f"buffer_load_dwordx4 v2, s[24:27], s53 offen offset:{i * 1024} lds")
        for i in range(4):
            g.append(f"s_add_u32 m0, s50, {65536 + st * 16384 + i * 1024}\n"
                     f"buffer_load_dwordx4 v{4 + i}, s[{w}:{w + 3}], s54 offen lds")
        return g

    vm = []
    for c in range(4):
        for g in dma(c):
            a(g)
        vm += [f"c{c}"] * 8
    st_()
    a("""
    s_lshl_b32 s48, s55, 13
    v_add_u32 v8, s48, v1
    v_bfe_u32 v14, v0, 2, 2
    v_lshlrev_b32 v9, 7, v14
    v_lshrrev_b32 v15, 5, v0
    v_lshl_add_u32 v9, v15, 9, v9
    v_lshrrev_b32 v14, 1, v14
    v_xor_b32 v14, s56, v14
    v_lshl_add_u32 v9, v14, 6, v9
    v_bfe_u32 v14, v0, 4, 1
    v_lshl_add_u32 v9, v14, 5, v9
    v_and_b32 v14, 1, v0
    v_lshl_add_u32 v9, v14, 4, v9
    v_bfe_u32 v14, v0, 1, 1
    v_lshl_add_u32 v9, v14, 3, v9
    v_add_u32 v9, 0x10000, v9
    v_and_b32 v14, 31, v0
    v_lshlrev_b32 v10, 10, v14
    v_lshl_add_u32 v10, v15, 4, v10
    s_lshl_b32 s48, s34, 1
    s_add_u32 s48, s48, s55
    s_lshl_b32 s48, s48, 15
    s_lshl_b32 s49, s35, 7
    s_add_u32 s48, s48, s49
    s_lshl_b32 s49, s56, 6
    s_add_u32 s48, s48, s49
    v_add_u32 v10, s48, v10
    """)

    def reads(n):
        c, pk = divmod(n, 4)
        st = c % 4
        f = FR[n % 2]
        out = []
        for u in range(2):
            ks = 2 * pk + u
            out.append(f"ds_read_b128 {vr(f + 8 * u, 4)}, v8 offset:{st * 16384 + ks * 1024}")
            for j in range(2):
                out.append(f"ds_read_b64_tr_b16 {vr(f + 8 * u + 4 + 2 * j, 2)}, v9 offset:{st * 16384 + ks * 2048 + j * 1024}")
        return out

    def mfmas(n):
        f = FR[n % 2]
        d = vr(ACC, 16)
        return [f"v_mfma_f32_32x32x16_bf16 {d}, {vr(f + 8 * u + 4, 4)}, {vr(f + 8 * u, 4)}, {'0' if (n == 0 and u == 0) else d}"
                for u in range(2)]

    for n in range(33):
        fill = []
        if n < 32 and n % 4 == 0:
            c = n // 4
            last = max(i for i, t in enumerate(vm) if t == f"c{c}")
            a(f"s_waitcnt vmcnt({len(vm) - 1 - last}) lgkmcnt(0)")
            a("s_barrier")
            st_()
            fill = reads(n)
            if 1 <= c <= 4:
                fill = fill + dma(c + 3)
                vm.extend([f"c{c + 3}"] * 8)
        else:
            a("s_waitcnt lgkmcnt(0)")
            if n < 32:
                fill = reads(n)
        if n == 0:
            for x in fill:
                a(x)
        else:
            spread(a, mfmas(n - 1), fill, 6)
    for i in range(8):
        a(f"v_cvt_pk_bf16_f32 v{16 + i}, v{ACC + 2 * i}, v{ACC + 2 * i + 1}")
    a("buffer_store_dwordx4 v[16:19], v10, s[16:19], 0 offen")
    a("buffer_store_dwordx4 v[20:23], v10, s[16:19], 0 offen offset:32")
    st_()
    st_.finish(4, 2)
    a.label("K3_done")
    a("s_endpgm")
    a.pad()
    return a.text(), desc("oproj_kernel", 64, 100), "grid=(256,1,1) block=(256,1,1) lds=131072"


HEADER = """; Kernarg layout (80 bytes, pointers only, base s[0:1]):
"""


def build(opt=None):
    opt = opt or {}
    ks = [("qkv_kernel", gen_k1(opt)), ("attn_kernel", gen_k2(opt)), ("oproj_kernel", gen_k3(opt))]
    if "order" in opt:
        ks.append(("nop_kernel", ("nop_kernel:\n    s_endpgm\n", desc("nop_kernel", 8, 16), "grid=(256,1,1) block=(64,1,1) lds=0")))
    order = opt.get("order", [0, 1, 2])
    out = HEADER
    for i in order:
        out += f"; @launch kernel={ks[i][0]} {ks[i][1][2]}\n"
    out += '.amdgcn_target "amdgcn-amd-amdhsa--gfx950"\n.text\n'
    for name, (body, _, _) in ks:
        out += f".globl {name}\n.p2align 8\n.type {name},@function\n{body}"
    out += '.section .rodata,"a"\n'
    for name, (_, d, _) in ks:
        out += ".p2align 6\n" + d
    return out


if __name__ == "__main__":
    path = sys.argv[1] if len(sys.argv) > 1 else f"cdna_kernels/{NAME}.s"
    opt = {}
    for kv in sys.argv[2:]:
        k, v = kv.split("=", 1)
        opt[k] = eval(v)
    open(path, "w").write(build(opt))
```
